```python
import torch

def _softmax(x, axis=-1):
    return torch.softmax(x, dim=axis)
def _gelu(x):
    return torch.nn.functional.gelu(x, approximate="tanh")
def _silu(x):
    return torch.nn.functional.silu(x)
def _sigmoid(x):
    return torch.sigmoid(x)
def _layernorm(x, axis=-1, eps=1e-5):
    m = x.mean(dim=axis, keepdim=True)
    v = x.var(dim=axis, keepdim=True, unbiased=False)
    return (x - m) / torch.sqrt(v + eps)
def _scatter_add(tgt, idx, src, axis=0):
    return tgt.clone().index_add_(axis, idx, src)
def _segment_sum(src, seg, n):
    out = torch.zeros((n,) + src.shape[1:], dtype=src.dtype)
    return out.index_add_(0, seg, src)
def _pad(x, pw):
    flat = tuple(v for pair in reversed(pw) for v in pair)
    return torch.nn.functional.pad(x, flat)

kernel_name = 'concat_heads__ssm_conv_h3__grouped_kv_mqa__prompt'

def setup_inputs():

    _w = (lambda a: (lambda t: t.to(torch.bfloat16) if t.is_floating_point() else t)(torch.as_tensor(a)))
    def _A_setup():
        B, S, D = 1, 2048, 448
        ks = 4
        return {
            "q": _w((lambda *s: torch.randn(*s, dtype=torch.bfloat16) * 0.05)(B, S, D)),
            "k": _w((lambda *s: torch.randn(*s, dtype=torch.bfloat16) * 0.2)(B, S, D)),
            "v": _w((lambda *s: torch.randn(*s, dtype=torch.bfloat16) * 0.2)(B, S, D)),
            "shift_k": _w((lambda *s: torch.randn(*s, dtype=torch.bfloat16) * 0.2)(D, ks) * 0.5),
            "ssm_k": _w((lambda *s: torch.randn(*s, dtype=torch.bfloat16) * 0.4)(D, S) * (1.0 / S ** 0.5)),
            "ssm_D": _w((lambda *s: torch.randn(*s, dtype=torch.bfloat16) * 0.2)(D)),
        }
    _A_in = _A_setup()

    def _B_setup():
        B, S, D, H = 1, 2048, 448, 16
        Dh = D // H
        return {
            "x": _w((lambda *s: torch.randn(*s, dtype=torch.bfloat16) * 0.05)(B, S, D)),
            "wq": _w((lambda *s: torch.randn(*s, dtype=torch.bfloat16) * 0.8)(D, H * Dh)),
            "wk": _w((lambda *s: torch.randn(*s, dtype=torch.bfloat16) * 0.8)(D, Dh)),
            "wv": _w((lambda *s: torch.randn(*s, dtype=torch.bfloat16) * 0.05)(D, Dh)),
            "wo": _w((lambda *s: torch.randn(*s, dtype=torch.bfloat16) * 0.05)(H * Dh, D)),
        }
    _B_in = _B_setup()

    return {
        "A_q": _A_in["q"],
        "A_k": _A_in["k"],
        "A_v": _A_in["v"],
        "A_shift_k": _A_in["shift_k"],
        "A_ssm_k": _A_in["ssm_k"],
        "A_ssm_D": _A_in["ssm_D"],
        "B_x": _B_in["x"],
        "B_wq": _B_in["wq"],
        "B_wk": _B_in["wk"],
        "B_wv": _B_in["wv"],
        "B_wo": _B_in["wo"],
    }

def reference(A_q, A_k, A_v, A_shift_k, A_ssm_k, A_ssm_D, B_x, B_wq, B_wk, B_wv, B_wo):
    def _A_ref(q, k, v, shift_k, ssm_k, ssm_D):
        B, S, D = q.shape
        ks = shift_k.shape[-1]
        k_pad = _pad(k, ((0, 0), (ks - 1, 0), (0, 0)))
        k_shift = torch.zeros_like(k)
        for t in range(ks):
            k_shift = k_shift + k_pad[:, t:t + S, :] * shift_k[:, ks - 1 - t][None, None, :]
        kv = k_shift * v
        L = 2 * S
        kv_pad = _pad(kv, ((0, 0), (0, S), (0, 0)))
        kf_pad = _pad(ssm_k, ((0, 0), (0, S)))
        kv_f = (lambda x, axes=(-2,-1): torch.fft.rfft2(x.float(), dim=axes))(kv_pad[:, None, :, :], axes=(1, 2))
        kf_f = (lambda x, axes=(-2,-1): torch.fft.rfft2(x.float(), dim=axes))(kf_pad[:, None, :], axes=(1, 2))
        kf_f = (lambda x, *d: x.permute(*d))(kf_f, 1, 2, 0)
        y_f = kv_f * kf_f[None, :, :, :]
        y = (lambda x, s, axes=(-2,-1): torch.fft.irfft2(x, s=s, dim=axes).to(torch.bfloat16))(y_f, (1, L), axes=(1, 2))[:, 0, :S, :]
        y = y + kv * ssm_D[None, None, :]
        return q * y

    def _B_ref(x, wq, wk, wv, wo):
        B, S, D = x.shape
        H = 16
        Dh = D // H
        q = (lambda x, *d: x.permute(*d))((x @ wq).reshape(B, S, H, Dh), 0, 2, 1, 3)
        k = x @ wk
        v = x @ wv
        scores = torch.einsum("bhqd,bkd->bhqk", q, k) * (Dh ** -0.5)
        p = _softmax(scores, axis=-1)
        o = torch.einsum("bhqk,bkd->bhqd", p, v)
        return (lambda x, *d: x.permute(*d))(o, 0, 2, 1, 3).reshape(B, S, H * Dh) @ wo

    a = _A_ref(A_q, A_k, A_v, A_shift_k, A_ssm_k, A_ssm_D)
    b = _B_ref(B_x, B_wq, B_wk, B_wv, B_wo)
    return torch.concatenate([a, b], axis=-1)
```

```python
import sys
kernels=[]
def kernel(name, body, iters=200, nv=128, pre="", accoff=None):
    s=f"""
.text
.globl {name}
.p2align 8
.type {name},@function
{name}:
  s_load_dwordx4 s[4:7], s[0:1], 0
  v_lshrrev_b32 v1, 6, v0
  s_nop 1
  v_readfirstlane_b32 s20, v1
  s_waitcnt lgkmcnt(0)
  v_lshlrev_b32 v2, 4, v0
"""
    for r in range(4, min(accoff or nv,128), 4):
        s+=f"  global_load_dwordx4 v[{r}:{r+3}], v2, s[6:7] offset:{(r*16)%4096}\n"
    s+="  s_waitcnt vmcnt(0)\n"
    s+=pre
    s+=f"""
  s_barrier
  s_mov_b32 s10, {iters}
  s_memtime s[12:13]
  s_memrealtime s[16:17]
  s_waitcnt lgkmcnt(0)
.p2align 6
L_{name}:
{body}
  s_sub_u32 s10, s10, 1
  s_cmp_lg_u32 s10, 0
  s_cbranch_scc1 L_{name}
  s_nop 15
  s_nop 15
  s_memtime s[14:15]
  s_memrealtime s[18:19]
  s_waitcnt lgkmcnt(0)
  s_sub_u32 s14, s14, s12
  s_sub_u32 s18, s18, s16
  s_mul_i32 s21, s2, BLK_{name}
  s_add_u32 s21, s21, s20
  s_lshl_b32 s21, s21, 3
  v_mov_b32 v1, s21
  v_mov_b32 v2, s14
  v_mov_b32 v3, s18
  global_store_dwordx2 v1, v[2:3], s[4:5]
  s_endpgm
.section .rodata,"a"
.p2align 6
.amdhsa_kernel {name}
  .amdhsa_next_free_vgpr {nv}
  .amdhsa_next_free_sgpr 32
  .amdhsa_accum_offset {accoff or min(256,(nv+3)//4*4)}
  .amdhsa_group_segment_fixed_size 0
  .amdhsa_kernarg_size 16
  .amdhsa_user_sgpr_count 2
  .amdhsa_user_sgpr_kernarg_segment_ptr 1
  .amdhsa_system_sgpr_workgroup_id_x 1
.end_amdhsa_kernel
"""
    return s
def meta(names):
    s="\n.amdgpu_metadata\n---\namdhsa.version: [1, 2]\namdhsa.kernels:\n"
    for n,nv in names:
        s+=f"""  - .name: {n}
    .symbol: {n}.kd
    .kernarg_segment_size: 16
    .kernarg_segment_align: 8
    .group_segment_fixed_size: 0
    .private_segment_fixed_size: 0
    .wavefront_size: 64
    .sgpr_count: 32
    .vgpr_count: {nv}
    .max_flat_workgroup_size: 1024
    .args:
      - {{.name: kernargs, .size: 16, .offset: 0, .value_kind: by_value}}
"""
    s+="...\n.end_amdgpu_metadata\n"
    return s
def build(fname, ks):
    out='.amdgcn_target "amdgcn-amd-amdhsa--gfx950"\n'
    names=[]; cmd=[]
    for k in ks:
        name,body,wl,nv=k[:4]; pre=k[4] if len(k)>4 else ""
        lds=k[5] if len(k)>5 else 0
        accoff=k[6] if len(k)>6 else None
        for w in wl:
            n=f"{name}_w{w}"
            out+=f".set BLK_{n}, {w}\n"+kernel(n, body.replace("@L@",n), nv=nv, pre=pre, accoff=accoff)
            names.append((n,nv)); cmd+= [n,"256",str(w*64),str(lds)]
    out+=meta(names)
    open(fname+".s","w").write(out)
    open(fname+".args","w").write(" ".join(cmd))
```

```python
def stamp(i): return f"  s_memrealtime s[30:31]\n  s_waitcnt lgkmcnt(0)\n  s_mov_b32 s{40+i}, s30\n"
def kernel(name, body, nv=128, ns=8):
    s=f"""
.text
.globl {name}
.p2align 8
.type {name},@function
{name}:
{stamp(0)}
  s_load_dwordx4 s[4:7], s[0:1], 0
  v_lshrrev_b32 v1, 6, v0
  s_nop 1
  v_readfirstlane_b32 s20, v1
  s_waitcnt lgkmcnt(0)
  s_mov_b32 s24, s6
  s_and_b32 s25, s7, 0xffff
  s_mov_b32 s26, 0x4000000
  s_mov_b32 s27, 0x20000
{body.replace('@L@',name)}
  s_cmp_lg_u32 s20, 0
  s_cbranch_scc1 END_{name}
  s_lshl_b32 s21, s2, 6
  v_mov_b32 v1, s21
"""
    for i in range(ns):
        s+=f"  v_mov_b32 v2, s{40+i}\n  global_store_dword v1, v2, s[4:5] offset:{4*i}\n"
    s+=f"""END_{name}:
  s_endpgm
.section .rodata,"a"
.p2align 6
.amdhsa_kernel {name}
  .amdhsa_next_free_vgpr {nv}
  .amdhsa_next_free_sgpr 64
  .amdhsa_accum_offset {min(256,(nv+3)//4*4)}
  .amdhsa_group_segment_fixed_size 0
  .amdhsa_kernarg_size 16
  .amdhsa_user_sgpr_count 2
  .amdhsa_user_sgpr_kernarg_segment_ptr 1
  .amdhsa_system_sgpr_workgroup_id_x 1
.end_amdhsa_kernel
"""
    return s
from gen import meta
def build(fname, ks):
    out='.amdgcn_target "amdgcn-amd-amdhsa--gfx950"\n'; names=[]; cmd=[]
    for name,body,grid,block,lds,ns,nv,fls in ks:
        init="".join(f"  s_mov_b32 s{40+i}, s40\n" for i in range(1,8))
        out+=kernel(name, init+body, nv=nv); names.append((name,nv))
        for fl in fls: cmd+=[name,str(grid),str(block),str(lds),str(ns),str(fl)]
    out+=meta(names).replace(".sgpr_count: 32",".sgpr_count: 64")
    open(fname+".s","w").write(out); open(fname+".args","w").write(" ".join(cmd))
```

```python
from gen2 import *
ks=[]
def cold(name, nld, mode, fl="", dma=False, block=512, mis=0):
    per=nld*block*16
    if mode=='tb': base=f"  s_and_b32 s35, s2, 31\n  s_mul_i32 s37, s35, {per}\n"
    elif mode=='wg': base=f"  s_mul_i32 s37, s2, {per}\n"
    else: base="  s_mov_b32 s37, 0\n"
    if mis: addr=f"  v_lshrrev_b32 v6, 3, v0\n  v_mul_u32_u24 v6, 896, v6\n  v_and_b32 v5, 7, v0\n  v_lshl_add_u32 v5, v5, 4, v6\n  v_add_u32 v5, {mis}, v5\n"
    else: addr="  v_lshlrev_b32 v5, 4, v0\n"
    step = block*16 if not mis else (block//8)*896
    body=f"""
{stamp(1)}
{base}
  s_add_u32 s37, s37, 0x800000
{addr}
  s_lshl_b32 s36, s20, 10
"""
    for i in range(nld):
        if dma: body+=f"  s_add_u32 m0, s36, {i*block*16}\n  s_add_u32 s39, s37, {i*step}\n  buffer_load_dwordx4 v5, s[24:27], s39 offen {fl} lds\n"
        else: body+=f"  s_add_u32 s39, s37, {i*step}\n  buffer_load_dwordx4 v[{16+4*(i%24)}:{19+4*(i%24)}], v5, s[24:27], s39 offen {fl}\n"
    body+=f"""
{stamp(2)}
  s_waitcnt vmcnt(0)
  s_barrier
{stamp(3)}
"""
    ks.append((name, body, 256,block,nld*block*16 if dma else 0,4,128,[1]))
for m in ['tb','all']:
  for nm,fl in [("pl",""),("nt","nt"),("sc1","sc1"),("sc01","sc0 sc1")]:
    cold(f"r_{m}_{nm}",14,m,fl)
    cold(f"d_{m}_{nm}",14,m,fl,True)
cold("d_all_mis0",7,'all',"",True,mis=128)
cold("d_all_mis",7,'all',"",True,mis=112)
cold("d_all_mis_nt",7,'all',"nt",True,mis=112)
cold("d_all_7",7,'all',"",True)
build("mb19",ks)
```
